```python
import torch

def _softmax(x, axis=-1):
    return torch.softmax(x, dim=axis)
def _gelu(x):
    return torch.nn.functional.gelu(x, approximate="tanh")
def _silu(x):
    return torch.nn.functional.silu(x)
def _sigmoid(x):
    return torch.sigmoid(x)
def _layernorm(x, axis=-1, eps=1e-5):
    m = x.mean(dim=axis, keepdim=True)
    v = x.var(dim=axis, keepdim=True, unbiased=False)
    return (x - m) / torch.sqrt(v + eps)
def _scatter_add(tgt, idx, src, axis=0):
    return tgt.clone().index_add_(axis, idx, src)
def _segment_sum(src, seg, n):
    out = torch.zeros((n,) + src.shape[1:], dtype=src.dtype)
    return out.index_add_(0, seg, src)
def _pad(x, pw):
    flat = tuple(v for pair in reversed(pw) for v in pair)
    return torch.nn.functional.pad(x, flat)

kernel_name = 'parallel_sum__sliding_block__glu_gated_geglu__prompt'

def setup_inputs():

    _w = (lambda a: (lambda t: t.to(torch.bfloat16) if t.is_floating_point() else t)(torch.as_tensor(a)))
    def _A_setup():
        B, S, D = 1, 2048, 1024
        return {
            "x": _w((lambda *s: torch.randn(*s, dtype=torch.bfloat16) * 0.05)(B, S, D)),
            "wqkv": _w((lambda *s: torch.randn(*s, dtype=torch.bfloat16) * 0.05)(D, 3 * D)),
            "wo": _w((lambda *s: torch.randn(*s, dtype=torch.bfloat16) * 0.05)(D, D)),
        }
    _A_in = _A_setup()

    def _B_setup():
        B, S, Dm, Df = 1, 2048, 1024, 3584
        return {
            "x": _w((lambda *s: torch.randn(*s, dtype=torch.bfloat16) * 0.05)(B, S, Dm)),
            "w_gate": _w((lambda *s: torch.randn(*s, dtype=torch.bfloat16) * 0.8)(Dm, Df) * (Dm ** -0.5)),
            "w_up": _w((lambda *s: torch.randn(*s, dtype=torch.bfloat16) * 0.8)(Dm, Df) * (Dm ** -0.5)),
            "w_down": _w((lambda *s: torch.randn(*s, dtype=torch.bfloat16) * 0.8)(Df, Dm) * (Df ** -0.5)),
        }
    _B_in = _B_setup()

    return {
        "A_x": _A_in["x"],
        "A_wqkv": _A_in["wqkv"],
        "A_wo": _A_in["wo"],
        "B_x": _B_in["x"],
        "B_w_gate": _B_in["w_gate"],
        "B_w_up": _B_in["w_up"],
        "B_w_down": _B_in["w_down"],
    }

def reference(A_x, A_wqkv, A_wo, B_x, B_w_gate, B_w_up, B_w_down):
    def _A_ref(x, wqkv, wo):
        B, S, D = x.shape
        H = 32; Dh = D // H; W = 256
        qkv = (lambda x, *d: x.permute(*d))((x @ wqkv).reshape(B, S, 3, H, Dh), 2, 0, 3, 1, 4)
        q, k, v = qkv[0], qkv[1], qkv[2]
        scores = torch.einsum("bhqd,bhkd->bhqk", q, k) * (Dh ** -0.5)
        idx = torch.arange(S)
        mask = (idx[:, None] - idx[None, :] >= 0) & (idx[:, None] - idx[None, :] < W)
        scores = torch.where(mask[None, None], scores, -1e9)
        p = _softmax(scores, axis=-1)
        o = torch.einsum("bhqk,bhkd->bhqd", p, v)
        return (lambda x, *d: x.permute(*d))(o, 0, 2, 1, 3).reshape(B, S, D) @ wo

    def _B_ref(x, w_gate, w_up, w_down):
        g = torch.einsum("bsd,df->bsf", x, w_gate)
        u = torch.einsum("bsd,df->bsf", x, w_up)
        h = _gelu(g) * u
        return torch.einsum("bsf,fd->bsd", h, w_down)

    x = A_x
    xn = _layernorm(x, axis=-1)
    return x + _A_ref(xn, A_wqkv, A_wo) + _B_ref(xn, B_w_gate, B_w_up, B_w_down)
```

```python
import re

TRANS = ('v_exp_f32', 'v_log_f32', 'v_rcp_f32', 'v_rsq_f32', 'v_sqrt_f32', 'v_sin_f32', 'v_cos_f32')


def _regs(tok):
    tok = tok.strip()
    tok = tok.lstrip('-')
    if tok.startswith('abs(') and tok.endswith(')'):
        tok = tok[4:-1]
    if tok.startswith('|') and tok.endswith('|'):
        tok = tok[1:-1]
    m = re.fullmatch(r'([vas])(\d+)', tok)
    if m:
        return {(m.group(1), int(m.group(2)))}
    m = re.fullmatch(r'([vas])\[(\d+):(\d+)\]', tok)
    if m:
        return {(m.group(1), i) for i in range(int(m.group(2)), int(m.group(3)) + 1)}
    if tok == 'vcc':
        return {('s', 'vcc')}
    if tok == 'm0':
        return {('s', 'm0')}
    if tok == 'exec':
        return {('s', 'exec')}
    return set()


class Ins:
    __slots__ = ('text', 'op', 'kind', 'dst', 'src', 'srcC', 'srcAB', 'passes', 'states', 'wide_store', 'lds_dma',
                 'is_trans', 'is_perm', 'is_dpp', 'is_rl', 'label', 'target', 'data')

    def __init__(self, text):
        self.text = text
        t = text.split(';')[0].strip()
        self.label = None
        self.target = None
        self.kind = 'other'
        self.dst = set()
        self.src = set()
        self.srcC = set()
        self.srcAB = set()
        self.data = set()
        self.passes = 0
        self.states = 1
        self.wide_store = False
        self.lds_dma = False
        self.is_trans = self.is_perm = self.is_dpp = self.is_rl = False
        self.op = ''
        if not t or t.startswith('.'):
            self.kind = 'dir'
            self.states = 0
            return
        if t.endswith(':'):
            self.kind = 'label'
            self.label = t[:-1]
            self.states = 0
            return
        parts = t.split(None, 1)
        op = parts[0]
        self.op = op
        rest = parts[1] if len(parts) > 1 else ''
        ops = []
        depth = 0
        cur = ''
        for ch in rest:
            if ch in '[(':
                depth += 1
            if ch in '])':
                depth -= 1
            if ch == ',' and depth == 0:
                ops.append(cur.strip())
                cur = ''
            else:
                cur += ch
        if cur.strip():
            ops.append(cur.strip())
        mods = ''
        if ops:
            sp = ops[-1].split(None, 1)
            if len(sp) > 1:
                ops[-1] = sp[0]
                mods = sp[1]
        base = re.sub(r'_(e32|e64|dpp|sdwa)$', '', op)
        R = [_regs(o) for o in ops]
        if op == 's_nop':
            self.kind = 'salu'
            self.states = int(ops[0], 0) + 1
        elif op.startswith('s_cbranch') or op == 's_branch':
            self.kind = 'branch'
            self.target = ops[0]
        elif op.startswith('s_'):
            self.kind = 'salu'
            if op.startswith(('s_cmp', 's_waitcnt', 's_barrier', 's_endpgm', 's_setprio', 's_sleep', 's_bitcmp')):
                for r in R:
                    self.src |= r
            else:
                if R:
                    self.dst |= R[0]
                for r in R[1:]:
                    self.src |= r
                if 'saveexec' in op:
                    self.dst.add(('s', 'exec'))
        elif op.startswith('v_mfma'):
            self.kind = 'mfma'
            self.dst = R[0]
            self.srcAB = R[1] | R[2]
            self.srcC = R[3]
            self.src = self.srcAB | self.srcC
            self.passes = 8 if '32x32' in op else 4
        elif op.startswith('v_'):
            self.kind = 'valu'
            self.is_trans = base in TRANS
            self.is_perm = base.startswith('v_permlane')
            self.is_dpp = op.endswith('_dpp') or 'row_' in mods or 'quad_perm' in mods
            self.is_rl = base in ('v_readfirstlane_b32', 'v_readlane_b32')
            if base.startswith('v_cmp'):
                self.dst = R[0]
                for r in R[1:]:
                    self.src |= r
            elif self.is_perm:
                self.dst = R[0] | R[1]
                self.src = R[0] | R[1]
            elif base in ('v_add_co_u32', 'v_sub_co_u32', 'v_addc_co_u32', 'v_subb_co_u32'):
                self.dst = R[0] | R[1]
                for r in R[2:]:
                    self.src |= r
            else:
                self.dst = R[0]
                for r in R[1:]:
                    self.src |= r
                if base in ('v_fmac_f32', 'v_dot2c_f32_bf16', 'v_pk_fmac_f16') or self.is_dpp:
                    self.src |= R[0]
                if base == 'v_cndmask_b32' and len(ops) == 3:
                    self.src.add(('s', 'vcc'))
        elif op.startswith('ds_'):
            self.kind = 'ds'
            if op.startswith(('ds_read', 'ds_bpermute', 'ds_permute', 'ds_swizzle')):
                self.dst = R[0]
                for r in R[1:]:
                    self.src |= r
            else:
                for r in R:
                    self.src |= r
        elif op.startswith(('buffer_', 'global_')):
            self.kind = 'vmem'
            allmods = mods.split()
            if op in ('buffer_inv', 'buffer_wbl2'):
                pass
            elif 'lds' in allmods or op.startswith('global_load_lds'):
                self.lds_dma = True
                for r in R:
                    self.src |= r
                self.src.add(('s', 'm0'))
            elif '_load' in op:
                self.dst = R[0]
                for r in R[1:]:
                    self.src |= r
            elif op.startswith('buffer_store') or op.startswith('buffer_atomic'):
                self.data = R[0]
                for r in R:
                    self.src |= r
                self.wide_store = op.endswith(('x3', 'x4'))
                if op.startswith('buffer_atomic') and 'sc0' in allmods:
                    self.dst = R[0]
            else:
                self.data = R[1]
                for r in R:
                    self.src |= r
                self.wide_store = op.endswith(('x3', 'x4'))
        else:
            raise ValueError('unknown instruction: ' + text)


def _vec(s):
    return {r for r in s if r[0] in 'va'}


def _sca(s):
    return {r for r in s if r[0] == 's'}


def need(p, c):
    n = 0
    if p.kind == 'valu':
        pv = _vec(p.dst)
        ps = _sca(p.dst)
        if c.kind == 'mfma' and pv & c.src:
            n = max(n, 2)
        if c.kind == 'valu':
            if p.is_trans and not c.is_trans and pv & c.src:
                n = max(n, 1)
            if (c.is_perm or c.is_dpp) and pv & c.src:
                n = max(n, 2)
            if c.is_rl and pv & c.src:
                n = max(n, 1)
            if ps & c.src:
                n = max(n, 4 if c.op.startswith(('v_readlane', 'v_writelane')) else 2)
        if c.kind == 'vmem' and ps & c.src:
            n = max(n, 5)
        if c.kind == 'salu' and ps & c.src:
            n = max(n, 2)
        if c.kind == 'branch' and ('s', 'vcc') in ps and 'vcc' in c.op:
            n = max(n, 5)
    if p.kind == 'mfma':
        t = {4: (6, 8, 8, 3), 8: (10, 12, 12, 7)}[p.passes]
        if c.kind == 'mfma':
            if p.dst & c.srcAB:
                n = max(n, t[1])
            if p.dst & c.srcC and not (p.dst == c.srcC and p.passes == c.passes):
                n = max(n, t[0])
            if p.dst & c.dst and not (p.dst == c.dst and p.passes == c.passes):
                n = max(n, t[0])
            if p.dst & c.dst and p.dst == c.dst and not (p.dst == c.srcC):
                n = max(n, t[0])
        elif c.kind in ('valu', 'ds', 'vmem'):
            if p.dst & (c.src | c.dst):
                n = max(n, t[2])
            if c.kind == 'valu' and p.srcC & c.dst:
                n = max(n, t[3])
    if p.kind == 'salu' and ('s', 'm0') in p.dst and c.lds_dma:
        n = max(n, 1)
    if p.kind == 'vmem' and p.wide_store and p.data & c.dst:
        n = max(n, 2)
    return n


class Asm:
    def __init__(self):
        self.lines = []

    def __call__(self, text):
        for ln in text.split('\n'):
            self.lines.append(ln.strip())

    def extend(self, other):
        self.lines.extend(other.lines if isinstance(other, Asm) else other)

    def fix_hazards(self, verbose=False):
        ins = [Ins(l) for l in self.lines]
        out = []
        W = 14
        nfix = 0
        for c in ins:
            if c.states > 0 and c.kind != 'dir':
                dist = 0
                req = 0
                for p in reversed(out):
                    if p.kind in ('dir',):
                        continue
                    if p.op in ('s_branch', 's_endpgm'):
                        break
                    if p.kind == 'label':
                        continue
                    nn = need(p, c)
                    if nn > dist:
                        req = max(req, nn - dist)
                    dist += p.states
                    if dist >= W:
                        break
                if req > 0:
                    nfix += 1
                    if verbose:
                        print('; hazard pad %d before: %s' % (req, c.text))
                    out.append(Ins('s_nop %d' % (req - 1)))
            out.append(c)
        lab = {x.label: i for i, x in enumerate(out) if x.kind == 'label'}
        for bi, b in enumerate(out):
            if b.kind != 'branch' or b.target not in lab:
                continue
            hist = []
            d = 0
            k = bi
            while k >= 0 and d < W:
                p = out[k]
                if k != bi and p.op in ('s_branch', 's_endpgm'):
                    break
                if p.states > 0:
                    hist.append(p)
                    d += p.states
                k -= 1
            k = lab[b.target]
            ahead = 0
            while k < len(out) and ahead < W:
                c = out[k]
                if c.states > 0:
                    dist = ahead
                    for p in hist:
                        nn = need(p, c)
                        if nn > dist and p is not b:
                            raise RuntimeError('hazard across branch %s: %s -> %s' % (b.text, p.text, c.text))
                        dist += p.states
                    ahead += c.states
                    if c.op in ('s_branch', 's_endpgm'):
                        break
                k += 1
        self.lines = [x.text for x in out]
        return nfix

    def text(self):
        return '\n'.join(self.lines) + '\n'
```

```python
import sys, math, struct
sys.path.insert(0, 'dev')
from asmlib import Asm

XF1 = 0
XF2 = 0x400000
XF2_ROW = 144 * 1024
KVX = 0x1800000
FLG = 0x2000000
STAMP = 0x3000000

OPT = dict(stamp=False, D=4, NW=5)


def f2u(x):
    return struct.unpack('<I', struct.pack('<f', x))[0]


def vr(b, n=4, p='v'):
    return f'{p}[{b}:{b + n - 1}]'


def ar(b, n=4):
    return vr(b, n, 'a')


def srd(A, d, lo, hi, nrec):
    if lo != d:
        A(f's_mov_b32 s{d}, s{lo}')
    A(f's_and_b32 s{d + 1}, s{hi}, 0xffff')
    A(f's_mov_b32 s{d + 2}, {nrec}')
    A(f's_mov_b32 s{d + 3}, 0x20000')


def header(A, name):
    A('.text')
    A(f'.globl {name}')
    A('.p2align 8')
    A(f'.type {name},@function')
    A(f'{name}:')


def descriptor(A, name, nv, ns, acc):
    A('.section .rodata,"a"')
    A('.p2align 6')
    A(f'.amdhsa_kernel {name}')
    A(f'  .amdhsa_next_free_vgpr {nv}')
    A(f'  .amdhsa_next_free_sgpr {ns}')
    A(f'  .amdhsa_accum_offset {acc}')
    A('  .amdhsa_group_segment_fixed_size 0')
    A('  .amdhsa_kernarg_size 80')
    A('  .amdhsa_user_sgpr_count 2')
    A('  .amdhsa_user_sgpr_kernarg_segment_ptr 1')
    A('  .amdhsa_system_sgpr_workgroup_id_x 1')
    A('.end_amdhsa_kernel')


def stamp(A, idx, sreg=90):
    if not OPT['stamp']:
        return
    A('s_memtime s[86:87]')
    A('s_waitcnt lgkmcnt(0)')
    A(f's_mov_b32 s{70 + idx}, s86')


def stamp_flush(A, kidx, n, wave_sreg):
    if not OPT['stamp']:
        return
    A('s_load_dwordx2 s[86:87], s[0:1], 72')
    A('s_memrealtime s[88:89]')
    A('s_waitcnt lgkmcnt(0)')
    A(f's_add_u32 s92, s86, {STAMP + kidx * 65536}')
    A('s_addc_u32 s93, s87, 0')
    A('s_and_b32 s93, s93, 0xffff')
    A('s_mov_b32 s94, 65536')
    A('s_mov_b32 s95, 0x20000')
    A('s_lshl_b32 s86, s2, 2')
    A(f's_add_u32 s86, s86, s{wave_sreg}')
    A('s_lshl_b32 s86, s86, 6')
    A('v_mov_b32 v1, 0')
    for k in range(n):
        A(f'v_mov_b32 v2, s{70 + k}')
        A(f'buffer_store_dword v2, v1, s[92:95], s86 offen offset:{4 * k}')
    A('v_mov_b32 v2, s88')
    A(f'buffer_store_dword v2, v1, s[92:95], s86 offen offset:60')
    A('v_mov_b32 v2, s85')
    A(f'buffer_store_dword v2, v1, s[92:95], s86 offen offset:56')


def stamp_begin(A):
    if not OPT['stamp']:
        return
    A('s_memrealtime s[84:85]')
    A('s_waitcnt lgkmcnt(0)')
    A('s_mov_b32 s85, s84')


def gen_ln():
    A = Asm()
    name = 'ln_kernel'
    header(A, name)
    A('s_cmp_ge_u32 s2, 256')
    A('s_cbranch_scc1 LN_end')
    A('s_load_dwordx2 s[4:5], s[0:1], 0')
    A('s_load_dwordx2 s[6:7], s[0:1], 72')
    stamp_begin(A)
    stamp(A, 0)
    A('v_and_b32 v1, 7, v0')
    A('v_bfe_u32 v2, v0, 3, 2')
    A('v_lshrrev_b32 v3, 5, v0')
    A('v_lshlrev_b32 v4, 11, v1')
    A('v_lshl_add_u32 v4, v3, 6, v4')
    A('v_lshl_add_u32 v4, v2, 3, v4')
    A('v_lshlrev_b32 v5, 10, v3')
    A('v_lshl_add_u32 v5, v2, 8, v5')
    A('v_lshl_add_u32 v5, v1, 4, v5')
    A('v_lshrrev_b32 v6, 6, v0')
    A('v_lshlrev_b32 v7, 4, v1')
    A('v_lshl_add_u32 v6, v6, 2, v7')
    A('s_lshl_b32 s20, s2, 14')
    A('s_lshr_b32 s21, s2, 1')
    A('s_lshl_b32 s21, s21, 15')
    A('s_and_b32 s22, s2, 1')
    A('s_lshl_b32 s22, s22, 7')
    A('s_add_u32 s21, s21, s22')
    A('s_lshl_b32 s23, s2, 7')
    A('s_waitcnt lgkmcnt(0)')
    srd(A, 8, 4, 5, 2048 * 1024 * 2)
    for m in range(4):
        A(f'buffer_load_dwordx2 {vr(8 + 4 * m, 2)}, v4, s[8:11], s20 offen offset:{512 * m}')
        A(f'buffer_load_dwordx2 {vr(10 + 4 * m, 2)}, v4, s[8:11], s20 offen offset:{512 * m + 32}')
    srd(A, 12, 6, 7, 2048 * 1024 * 2)
    A(f's_add_u32 s16, s6, {FLG}')
    A('s_addc_u32 s17, s7, 0')
    A('s_add_u32 s16, s16, s23')
    A('s_addc_u32 s17, s17, 0')
    srd(A, 16, 16, 17, 16)
    A('v_lshlrev_b32 v56, 2, v0')
    A('v_mov_b32 v57, 0')
    A('buffer_store_dword v57, v56, s[16:19], 0 offen')
    A('s_mov_b32 s24, 0xffff0000')
    A('s_waitcnt vmcnt(1)')
    for k in range(16):
        A(f'v_lshlrev_b32 v{24 + 2 * k}, 16, v{8 + k}')
        A(f'v_and_b32 v{25 + 2 * k}, s24, v{8 + k}')

    def reduce(acc, ldsoff):
        A(f'v_add_f32_dpp v{acc}, v{acc}, v{acc} row_ror:8 row_mask:0xf bank_mask:0xf')
        A(f'v_mov_b32 v59, v{acc}')
        A(f'v_permlane16_swap_b32 v59, v{acc}')
        A(f'v_add_f32 v{acc}, v{acc}, v59')
        A(f'v_mov_b32 v59, v{acc}')
        A(f'v_permlane32_swap_b32 v59, v{acc}')
        A(f'v_add_f32 v{acc}, v{acc}, v59')
        A(f'ds_write_b32 v6, v{acc} offset:{ldsoff}')
        A('s_waitcnt lgkmcnt(0)')
        A('s_barrier')
        A(f'ds_read_b128 v[60:63], v7 offset:{ldsoff}')
        A('s_waitcnt lgkmcnt(0)')
        A('v_add_f32 v60, v60, v61')
        A('v_add_f32 v62, v62, v63')
        A(f'v_add_f32 v{acc}, v60, v62')

    A('v_pk_add_f32 v[64:65], v[24:25], v[26:27]')
    A('v_pk_add_f32 v[66:67], v[28:29], v[30:31]')
    for k in range(4, 16, 2):
        A(f'v_pk_add_f32 v[64:65], v[64:65], {vr(24 + 2 * k, 2)}')
        A(f'v_pk_add_f32 v[66:67], v[66:67], {vr(26 + 2 * k, 2)}')
    A('v_pk_add_f32 v[64:65], v[64:65], v[66:67]')
    A('v_add_f32 v58, v64, v65')
    reduce(58, 0)
    A(f'v_mul_f32 v68, {-1.0 / 1024}, v58'.replace(str(-1.0 / 1024), hex(f2u(-1.0 / 1024))))
    A('v_mov_b32 v64, 0')
    A('v_mov_b32 v65, 0')
    A('v_mov_b32 v66, 0')
    A('v_mov_b32 v67, 0')
    for k in range(16):
        t = 70 + 2 * (k % 4)
        A(f'v_pk_add_f32 {vr(t, 2)}, {vr(24 + 2 * k, 2)}, v[68:69] op_sel_hi:[1,0]')
        acc = 64 + 2 * (k % 2)
        A(f'v_pk_fma_f32 {vr(acc, 2)}, {vr(t, 2)}, {vr(t, 2)}, {vr(acc, 2)}')
    A('v_pk_add_f32 v[64:65], v[64:65], v[66:67]')
    A('v_add_f32 v58, v64, v65')
    reduce(58, 128)
    A(f'v_mul_f32 v58, {hex(f2u(1.0 / 1024))}, v58')
    A('v_cvt_pk_bf16_f32 v68, v68, v68')
    A('v_and_b32 v68, s24, v68')
    A('v_cvt_pk_bf16_f32 v58, v58, v58')
    A('v_and_b32 v58, s24, v58')
    A(f'v_add_f32 v58, {hex(f2u(1e-5))}, v58')
    A('v_cvt_pk_bf16_f32 v58, v58, v58')
    A('v_and_b32 v58, s24, v58')
    A('v_sqrt_f32 v58, v58')
    A('v_cvt_pk_bf16_f32 v58, v58, v58')
    A('v_and_b32 v58, s24, v58')
    A('v_rcp_f32 v58, v58')
    for k in range(16):
        t = 70 + 2 * (k % 4)
        A(f'v_pk_add_f32 {vr(t, 2)}, {vr(24 + 2 * k, 2)}, v[68:69] op_sel_hi:[1,0]')
        A(f'v_cvt_pk_bf16_f32 v{t + 1}, v{t}, v{t + 1}')
        A(f'v_lshlrev_b32 v{t}, 16, v{t + 1}')
        A(f'v_and_b32 v{t + 1}, s24, v{t + 1}')
        A(f'v_pk_mul_f32 {vr(t, 2)}, {vr(t, 2)}, v[58:59] op_sel_hi:[1,0]')
        A(f'v_cvt_pk_bf16_f32 v{8 + k}, v{t}, v{t + 1}')
        if k % 4 == 3:
            m = k // 4
            A(f'buffer_store_dwordx4 {vr(8 + 4 * m)}, v5, s[12:15], s21 offen')
            if m < 3:
                A('s_add_u32 s21, s21, 8192')
    stamp(A, 1)
    if OPT['stamp']:
        A('v_lshrrev_b32 v6, 6, v0')
        A('v_readfirstlane_b32 s3, v6')
    stamp_flush(A, 0, 2, 3)
    A('LN_end:')
    A('s_endpgm')
    return A, (name, 80, 100 if OPT['stamp'] else 32, 80)


def gen_g1():
    A = Asm()
    name = 'g1_kernel'
    D = OPT['D']
    NW = OPT['NW']
    header(A, name)
    SLOT = 40960
    vLane, vX, vQ, vGU0, dQ0, dQ1, dGU = 1, 2, 3, 4, 11, 12, 13
    GACC, UACC = 32, 144
    QA, KA, VA, XR, WR = 0, 32, 64, 96, 160

    A('s_cmp_ge_u32 s2, 256')
    A('s_cbranch_scc1 G1_end')
    A('s_load_dwordx2 s[48:49], s[0:1], 8')
    A('s_load_dwordx4 s[52:55], s[0:1], 32')
    A('s_load_dwordx2 s[50:51], s[0:1], 72')
    stamp_begin(A)
    stamp(A, 0)
    A('v_lshrrev_b32 v14, 6, v0')
    A('v_and_b32 v1, 63, v0')
    A('v_readfirstlane_b32 s3, v14')
    A('s_and_b32 s5, s2, 7')
    A('s_lshl_b32 s5, s5, 2')
    A('s_bfe_u32 s6, s2, 0x20003')
    A('s_add_u32 s5, s5, s6')
    A('s_lshr_b32 s4, s2, 5')
    A('v_lshlrev_b32 v2, 4, v1')
    A('v_lshrrev_b32 v14, 2, v1')
    A('v_mul_u32_u24 v3, 6144, v14')
    A('v_bfe_u32 v15, v1, 4, 1')
    A('v_and_b32 v16, 3, v1')
    A('v_lshlrev_b32 v17, 1, v15')
    A('v_xor_b32 v17, v17, v16')
    A('v_lshl_add_u32 v3, v17, 4, v3')
    A('v_lshlrev_b32 v11, 6, v14')
    A('v_lshl_add_u32 v11, v16, 3, v11')
    A('v_lshl_add_u32 v11, v15, 5, v11')
    A('v_xor_b32 v12, 32, v11')
    A('v_mul_u32_u24 v13, 224, v14')
    A('v_lshl_add_u32 v13, v16, 3, v13')
    A('s_and_b32 s6, s5, 1')
    A('s_lshl_b32 s6, s6, 1')
    for n in range(7):
        A(f'v_add_u32 v14, {64 * n}, v1')
        A('v_mul_u32_u24 v15, 4682, v14')
        A('v_lshrrev_b32 v15, 16, v15')
        A('v_mul_u32_u24 v16, 14, v15')
        A('v_sub_u32 v16, v14, v16')
        A('v_add_u32 v16, s6, v16')
        A('v_subrev_u32 v17, 14, v16')
        A('v_min_u32 v16, v16, v17')
        A('v_mul_u32_u24 v15, 7168, v15')
        A(f'v_lshl_add_u32 v{vGU0 + n}, v16, 4, v15')
    A('s_waitcnt lgkmcnt(0)')
    A('s_lshl_b32 s6, s5, 6')
    A('s_add_u32 s8, s48, s6')
    A('s_addc_u32 s9, s49, 0')
    A(f's_sub_u32 s7, {1024 * 6144}, s6')
    srd(A, 8, 8, 9, 's7')
    A('s_cmp_lt_u32 s3, 2')
    A('s_cselect_b32 s12, s52, s54')
    A('s_cselect_b32 s13, s53, s55')
    A('s_mul_i32 s6, s5, 224')
    A('s_add_u32 s12, s12, s6')
    A('s_addc_u32 s13, s13, 0')
    A(f's_sub_u32 s7, {1024 * 7168}, s6')
    srd(A, 12, 12, 13, 's7')
    A('s_lshl_b32 s6, s4, 2')
    A('s_add_u32 s6, s6, s3')
    A('s_lshl_b32 s56, s6, 2')
    A('s_lshl_b32 s6, s6, 17')
    A('s_add_u32 s16, s50, s6')
    A('s_addc_u32 s17, s51, 0')
    srd(A, 16, 16, 17, 131072)
    A(f's_mul_i32 s36, s3, {16 * 6144}')
    A('s_add_u32 s37, s36, 2048')
    A('s_add_u32 s38, s36, 4096')
    A('s_and_b32 s39, s3, 1')
    A(f's_mul_i32 s39, s39, {32 * 7168}')
    A('s_mov_b32 s40, 0')
    A('s_mov_b32 s41, 0x8000')
    A('s_mov_b32 s42, 0x10000')
    A('s_mov_b32 s43, 0x18000')
    A('s_lshl_b32 s44, s3, 10')
    A('s_mul_i32 s45, s3, 7168')
    A('s_add_u32 s45, s45, 12288')

    def dma(n, slot):
        if n < 3:
            return (f's_add_u32 m0, s44, {slot * SLOT + n * 4096}',
                    f'buffer_load_dwordx4 v{vQ}, s[8:11], s{36 + n} offen lds')
        k = n - 3
        return (f's_add_u32 m0, s45, {slot * SLOT + k * 1024}',
                f'buffer_load_dwordx4 v{vGU0 + k}, s[12:15], s39 offen lds')

    def dma_adv():
        return [f's_add_u32 s36, s36, {64 * 6144}', f's_add_u32 s37, s37, {64 * 6144}',
                f's_add_u32 s38, s38, {64 * 6144}', f's_add_u32 s39, s39, {64 * 7168}']

    def xload(step, b):
        return f'buffer_load_dwordx4 {ar(XR + ((step % 4) * 4 + b) * 4)}, v{vX}, s[16:19], s{40 + b} offen offset:{(step % 4) * 1024}'

    def dma_range(slot, lo, hi):
        for n in range(lo, hi):
            m, l = dma(n, slot)
            A(m)
            A(l)

    dma_range(0, 0, 5)
    for b in range(4):
        A(xload(0, b))
    dma_range(0, 5, 10)
    for s in dma_adv():
        A(s)
    for b in range(4):
        A(xload(1, b))
    dma_range(1, 0, 5)
    for b in range(4):
        A(xload(2, b))
    dma_range(1, 5, 10)
    for s in dma_adv():
        A(s)
    A(f's_add_u32 s20, s50, {XF2}')
    A('s_addc_u32 s21, s51, 0')
    srd(A, 20, 20, 21, 128 * XF2_ROW)
    A('s_lshl_b32 s6, s4, 5')
    A('s_add_u32 s6, s6, s5')
    A('s_lshl_b32 s7, s6, 15')
    A(f's_add_u32 s24, s50, {KVX}')
    A('s_addc_u32 s25, s51, 0')
    A('s_add_u32 s24, s24, s7')
    A('s_addc_u32 s25, s25, 0')
    A(f's_sub_u32 s28, s24, {32 * 32768}')
    A('s_subb_u32 s29, s25, 0')
    srd(A, 24, 24, 25, 32768)
    srd(A, 28, 28, 29, 32768)
    A('s_lshl_b32 s7, s6, 7')
    A('s_lshl_b32 s6, s3, 2')
    A('s_add_u32 s7, s7, s6')
    A(f's_add_u32 s32, s50, {FLG}')
    A('s_addc_u32 s33, s51, 0')
    A('s_add_u32 s32, s32, s7')
    A('s_addc_u32 s33, s33, 0')
    A(f's_sub_u32 s60, s32, {32 * 128}')
    A('s_subb_u32 s61, s33, 0')
    srd(A, 32, 32, 33, 4)
    srd(A, 60, 60, 61, 4)
    for r in range(GACC, 256):
        A(f'v_mov_b32 v{r}, 0')
    for r in range(96):
        A(f'v_accvgpr_write_b32 a{r}, 0')

    def frag(g):
        g %= 160
        return g // 40, (g % 40) // 20, g % 20

    def reads(g):
        st, ks, f = frag(g)
        dst = WR + (g % NW) * 4
        if f < 6:
            mat, hf = f // 2, f % 2
            addr = dQ0 + hf
            off = mat * 4096 + ks * 2048
            po = 1024
        else:
            t = (f - 6) % 7
            addr = dGU
            off = (12288 if f < 13 else 26624) + ks * 7168 + 32 * t
            po = 3584
        return [f'ds_read_b64_tr_b16 {ar(dst, 2)}, v{addr} offset:{off}',
                f'ds_read_b64_tr_b16 {ar(dst + 2, 2)}, v{addr} offset:{off + po}']

    def mfmas(g):
        st, ks, f = frag(g)
        step = st * 2 + ks
        w = ar(WR + (g % NW) * 4)
        out = []
        for b in range(4):
            x = ar(XR + ((step % 4) * 4 + b) * 4)
            if f < 6:
                acc = ar((f * 4 + b) * 4)
            elif f < 13:
                acc = vr(GACC + ((f - 6) * 4 + b) * 4)
            else:
                acc = vr(UACC + ((f - 13) * 4 + b) * 4)
            if f in (4, 5):
                out.append(f'v_mfma_f32_16x16x32_bf16 {acc}, {x}, {w}, {acc}')
            else:
                out.append(f'v_mfma_f32_16x16x32_bf16 {acc}, {w}, {x}, {acc}')
        return out

    stamp(A, 1)
    A('s_waitcnt vmcnt(18)')
    A('s_barrier')
    for g in range(D):
        for r in reads(g):
            A(r)
    A('s_mov_b32 s46, 4')
    stamp(A, 2)
    A('.p2align 6')
    A('G1_loop:')
    for g in range(160):
        st, ks, f = frag(g)
        step = st * 2 + ks
        pre = []
        mid = []
        late = []
        post = []
        wait = f's_waitcnt lgkmcnt({2 * (D - 1)})'
        if f == 0:
            wait = f's_waitcnt vmcnt(23) lgkmcnt({2 * (D - 1)})'
            if step % 4 == 1:
                pre += [f's_add_u32 s{40 + b}, s{40 + b}, 4096' for b in range(4)]
        if f in (0, 2, 4, 6):
            late.append(xload(step + 3, f // 2))
        if f in (8, 10, 12, 14, 16):
            m, l = dma(ks * 5 + (f - 8) // 2, (st + 2) % 4)
            pre.append(m)
            late.append(l)
        if f == 18 and ks == 1:
            late += dma_adv()
        gi = g % 40
        if gi == 40 - D:
            nlater = 9 + sum(1 for ff in (0, 2, 4, 6, 8, 10, 12, 14, 16) if 20 + ff < gi)
            if gi < 20:
                raise ValueError
            mid += [f's_waitcnt vmcnt({nlater})', 's_barrier']
        if gi == 39 - D:
            inc = SLOT if st != 3 else -3 * SLOT
            if inc > 0:
                post += [f'v_add_u32 v{r}, {inc}, v{r}' for r in (dQ0, dQ1, dGU)]
            else:
                post += [f'v_subrev_u32 v{r}, {-inc}, v{r}' for r in (dQ0, dQ1, dGU)]
        mf = mfmas(g)
        rd = reads(g + D)
        for s in pre:
            A(s)
        A(wait)
        A(mf[0])
        for s in mid:
            A(s)
        A(rd[0])
        A(mf[1])
        A(rd[1])
        A(mf[2])
        for s in late:
            A(s)
        if g == 159:
            A('s_sub_u32 s46, s46, 1')
            A('s_cmp_lg_u32 s46, 0')
        A(mf[3])
        for s in post:
            A(s)
    A('s_cbranch_scc1 G1_loop')
    stamp(A, 3)
    A('s_waitcnt vmcnt(0) lgkmcnt(0)')
    A('s_barrier')
    KL, VL = 0, 32768
    A('s_lshl_b32 s6, s3, 12')
    A('v_add_u32 v3, s6, v2')
    T = 14
    nbuf = 0
    for b in range(4):
        for c in range(2):
            for r in range(4):
                A(f'v_accvgpr_read_b32 v{T + c * 4 + r}, a{KA + (c * 4 + b) * 4 + r}')
        P = 24 + 4 * (nbuf % 2)
        nbuf += 1
        for k in range(4):
            A(f'v_cvt_pk_bf16_f32 v{P + k}, v{T + 2 * k}, v{T + 2 * k + 1}')
        A(f'ds_write_b128 v3, {vr(P)} offset:{KL + 16384 + b * 1024}')
        A(f'buffer_store_dwordx4 {vr(P)}, v3, s[24:27], 0 offen offset:{b * 1024} sc0 sc1')
    A('s_movk_i32 s7, 0x4000')
    for m in range(2):
        for c in range(2):
            for h in range(2):
                for r in range(4):
                    A(f'v_accvgpr_read_b32 v{T + h * 4 + r}, a{VA + (c * 4 + 2 * m + h) * 4 + r}')
            P = 24 + 4 * (nbuf % 2)
            nbuf += 1
            for k in range(4):
                A(f'v_cvt_pk_bf16_f32 v{P + k}, v{T + 2 * k}, v{T + 2 * k + 1}')
            A(f'ds_write_b128 v3, {vr(P)} offset:{VL + 16384 + (2 * m + c) * 1024}')
            A(f'buffer_store_dwordx4 {vr(P)}, v3, s[24:27], s7 offen offset:{(2 * m + c) * 1024} sc0 sc1')
    A('s_mul_i32 s6, s5, 7')
    A('s_add_u32 s6, s6, 1')
    A('s_lshr_b32 s6, s6, 1')
    A('s_add_u32 s6, s6, 32')
    A('s_lshl_b32 s6, s6, 10')
    A(f's_mul_i32 s7, s56, {XF2_ROW}')
    A('s_add_u32 s36, s7, s6')
    A('s_movk_i32 s6, 3072')
    A('s_bitcmp1_b32 s5, 0')
    A('s_cselect_b32 s6, -1016, s6')
    A('s_add_u32 s40, s36, s6')
    A('s_lshl_b32 s6, s5, 10')
    A('s_add_u32 s44, s7, s6')
    for b in range(1, 4):
        A(f's_add_u32 s{36 + b}, s{35 + b}, {XF2_ROW}')
        A(f's_add_u32 s{40 + b}, s{39 + b}, {XF2_ROW}')
        A(f's_add_u32 s{64 + b}, s44, {XF2_ROW * b}')
    A('s_mov_b32 s64, s44')
    c = math.sqrt(2.0 / math.pi)
    l2e = math.log2(math.e)
    k1 = -2 * c * l2e
    k2 = k1 * 0.044715
    A(f'v_mov_b32 v4, {hex(f2u(k2))}')
    A(f'v_mov_b32 v5, {hex(f2u(k1))}')
    A('v_mov_b32 v8, 0')
    A('v_mov_b32 v9, 1')
    A('v_lshlrev_b32 v10, 2, v1')

    def glu_block(b):
        pairs = []
        for t in range(7):
            for h in range(2):
                g = GACC + (t * 4 + b) * 4 + 2 * h
                u = UACC + (t * 4 + b) * 4 + 2 * h
                if t < 6:
                    dst = GACC + ((t // 2 * 2) * 4 + b) * 4 + (t % 2) * 2 + h
                else:
                    dst = GACC + (6 * 4 + b) * 4 + h
                pairs.append((g, u, dst))
        for k in range(0, 14, 2):
            two = pairs[k:k + 2]
            tm = [14, 16]
            for (g, u, d), t in zip(two, tm):
                A(f'v_pk_mul_f32 {vr(t, 2)}, {vr(g, 2)}, {vr(g, 2)}')
            for (g, u, d), t in zip(two, tm):
                A(f'v_pk_fma_f32 {vr(t, 2)}, {vr(t, 2)}, v[4:5], v[4:5] op_sel:[0,0,1] op_sel_hi:[1,0,1]')
            for (g, u, d), t in zip(two, tm):
                A(f'v_pk_mul_f32 {vr(t, 2)}, {vr(t, 2)}, {vr(g, 2)}')
            for (g, u, d), t in zip(two, tm):
                A(f'v_exp_f32 v{t}, v{t}')
                A(f'v_exp_f32 v{t + 1}, v{t + 1}')
            for (g, u, d), t in zip(two, tm):
                A(f'v_pk_mul_f32 {vr(u, 2)}, {vr(g, 2)}, {vr(u, 2)}')
            for (g, u, d), t in zip(two, tm):
                A(f'v_pk_add_f32 {vr(t, 2)}, {vr(t, 2)}, 1.0 op_sel_hi:[1,0]')
            for (g, u, d), t in zip(two, tm):
                A(f'v_rcp_f32 v{t}, v{t}')
                A(f'v_rcp_f32 v{t + 1}, v{t + 1}')
            for (g, u, d), t in zip(two, tm):
                A(f'v_pk_mul_f32 {vr(u, 2)}, {vr(u, 2)}, {vr(t, 2)}')
            for (g, u, d), t in zip(two, tm):
                A(f'v_cvt_pk_bf16_f32 v{d}, v{u}, v{u + 1}')

    def h_stores(b):
        for p in range(3):
            A(f'buffer_store_dwordx4 {vr(GACC + (2 * p * 4 + b) * 4)}, v2, s[20:23], s{36 + b} offen offset:{p * 1024} sc0 sc1')
        A(f'buffer_store_dwordx2 {vr(GACC + (24 + b) * 4, 2)}, v2, s[20:23], s{40 + b} offen sc0 sc1')

    stamp(A, 4)
    glu_block(0)
    A('s_waitcnt vmcnt(0)')
    A('buffer_store_dword v9, v10, s[32:35], 0 offen sc0 sc1')
    glu_block(1)
    A('s_cmp_eq_u32 s4, 0')
    A('s_cbranch_scc1 G1_nopoll1')
    A('buffer_load_dword v18, v8, s[60:63], 0 offen sc0 sc1')
    A('G1_nopoll1:')
    glu_block(2)
    A('s_cmp_eq_u32 s4, 0')
    A('s_cbranch_scc1 G1_first')
    A('s_mov_b32 s6, 0')
    A('G1_poll:')
    A('s_waitcnt vmcnt(0)')
    A('v_readfirstlane_b32 s7, v18')
    A('s_cmp_eq_u32 s7, 1')
    A('s_cbranch_scc1 G1_got')
    A('s_add_u32 s6, s6, 1')
    A('s_cmp_ge_u32 s6, 0x40000')
    A('s_cbranch_scc1 G1_got')
    A('s_sleep 1')
    A('buffer_load_dword v18, v8, s[60:63], 0 offen sc0 sc1')
    A('s_branch G1_poll')
    A('G1_got:')
    A('s_movk_i32 s7, 0x4000')
    for k in range(4):
        A(f'buffer_load_dwordx4 {ar(96 + 4 * k)}, v3, s[28:31], 0 offen offset:{k * 1024} sc0 sc1')
    for k in range(4):
        A(f'buffer_load_dwordx4 {ar(112 + 4 * k)}, v3, s[28:31], s7 offen offset:{k * 1024} sc0 sc1')
    A('s_branch G1_join')
    A('G1_first:')
    for r in range(96, 128):
        A(f'v_accvgpr_write_b32 a{r}, 0')
    A('G1_join:')
    for b in range(3):
        h_stores(b)
    glu_block(3)
    h_stores(3)
    stamp(A, 5)
    QF, MA, MB, ONES, OA = 32, 48, 52, 56, 60
    SB = [96, 168]
    for b in range(4):
        for c in range(2):
            for r in range(4):
                A(f'v_accvgpr_read_b32 v{T + c * 4 + r}, a{QA + (c * 4 + b) * 4 + r}')
        for k in range(4):
            A(f'v_cvt_pk_bf16_f32 v{QF + 4 * b + k}, v{T + 2 * k}, v{T + 2 * k + 1}')
    A('v_and_b32 v14, 15, v1')
    A('v_lshrrev_b32 v15, 4, v1')
    A('v_lshlrev_b32 v15, 2, v15')
    A(f'v_mov_b32 v17, {hex(f2u(-1e30))}')
    for r in range(4):
        A(f'v_add_u32 v16, {r}, v15')
        A('v_cmp_gt_u32 vcc, v16, v14')
        A(f'v_cndmask_b32 v{MA + r}, v17, v8, vcc')
        A(f'v_cndmask_b32 v{MB + r}, v8, v17, vcc')
        A(f'v_mov_b32 v{ONES + r}, 0x3f803f80')
    cs = (32 ** -0.5) * l2e
    A(f's_mov_b32 s46, {hex(f2u(cs))}')
    A(f's_mov_b32 s47, {hex(f2u(cs))}')
    A('s_waitcnt vmcnt(16)')
    for k in range(4):
        A(f'ds_write_b128 v3, {ar(96 + 4 * k)} offset:{KL + k * 1024}')
    for k in range(4):
        A(f'ds_write_b128 v3, {ar(112 + 4 * k)} offset:{VL + k * 1024}')
    A('s_waitcnt lgkmcnt(0)')
    A('s_barrier')
    stamp(A, 6)
    KF, VF = 96, 176
    for n in range(20):
        A(f'ds_read_b128 {ar(KF + 4 * n)}, v3 offset:{KL + n * 1024}')
    A('s_waitcnt lgkmcnt(0)')
    for n in range(20):
        A(f'ds_read_b128 {ar(VF + 4 * n)}, v3 offset:{VL + n * 1024}')

    for blk in range(4):
        p, isB = blk >> 1, blk & 1
        S = SB[blk & 1]
        tiles = list(range(isB, 17 + isB))
        q = vr(QF + 4 * blk)
        for n in tiles:
            cop = vr(MA) if n == tiles[0] else (vr(MB) if n == tiles[-1] else '0')
            A(f'v_mfma_f32_16x16x32_bf16 {vr(S + 4 * n)}, {ar(KF + 4 * (2 * p + n))}, {q}, {cop}')
        A('s_cmp_lg_u32 s4, 0')
        A(f's_cbranch_scc1 G1_nomask{blk}')
        A('s_nop 7')
        A('s_lshl_b32 s6, s3, 2')
        A(f's_sub_i32 s6, {16 - 2 * p}, s6')
        for n in tiles:
            if n >= 16 - 2 * p:
                break
            A(f's_cmp_le_i32 s6, {n}')
            A(f's_cbranch_scc1 G1_nomask{blk}')
            for r in range(4):
                A(f'v_mov_b32 v{S + 4 * n + r}, v17')
        A(f'G1_nomask{blk}:')
        A('s_nop 7')
        regs = [S + 4 * n + r for n in tiles for r in range(4)]
        m0, m1 = 18, 19
        A(f'v_max_f32 v{m0}, v{regs[0]}, v{regs[1]}')
        A(f'v_max_f32 v{m1}, v{regs[2]}, v{regs[3]}')
        for k in range(4, 68, 4):
            A(f'v_max3_f32 v{m0}, v{m0}, v{regs[k]}, v{regs[k + 1]}')
            A(f'v_max3_f32 v{m1}, v{m1}, v{regs[k + 2]}, v{regs[k + 3]}')
        A(f'v_max_f32 v{m0}, v{m0}, v{m1}')
        A(f'v_mov_b32 v{m1}, v{m0}')
        A(f'v_permlane32_swap_b32 v{m1}, v{m0}')
        A(f'v_max_f32 v{m0}, v{m0}, v{m1}')
        A(f'v_mov_b32 v{m1}, v{m0}')
        A(f'v_permlane16_swap_b32 v{m1}, v{m0}')
        A(f'v_max_f32 v{m0}, v{m0}, v{m1}')
        A(f'v_mul_f32 v{m0}, s46, v{m0}')
        for k in range(0, 68, 2):
            A(f'v_pk_fma_f32 {vr(regs[k], 2)}, {vr(regs[k], 2)}, s[46:47], {vr(m0, 2)} op_sel_hi:[1,1,0] neg_lo:[0,0,1] neg_hi:[0,0,1]')
        for k in range(68):
            A(f'v_exp_f32 v{regs[k]}, v{regs[k]}')
        for n in range(18):
            base = S + 8 * (n // 2) + 2 * (n % 2)
            if n in tiles:
                A(f'v_cvt_pk_bf16_f32 v{base}, v{S + 4 * n}, v{S + 4 * n + 1}')
                A(f'v_cvt_pk_bf16_f32 v{base + 1}, v{S + 4 * n + 2}, v{S + 4 * n + 3}')
            else:
                A(f'v_mov_b32 v{base}, 0')
                A(f'v_mov_b32 v{base + 1}, 0')
        if blk == 0:
            A('s_waitcnt lgkmcnt(0)')
        O = OA + 12 * (blk & 1)
        for g in range(9):
            pf = vr(S + 8 * g)
            for c in range(2):
                cop = '0' if g == 0 else vr(O + 4 * c)
                A(f'v_mfma_f32_16x16x32_bf16 {vr(O + 4 * c)}, {ar(VF + 4 * (2 * (p + g) + c))}, {pf}, {cop}')
            cop = '0' if g == 0 else vr(O + 8)
            A(f'v_mfma_f32_16x16x32_bf16 {vr(O + 8)}, {vr(ONES)}, {pf}, {cop}')
        A(f'v_rcp_f32 v20, v{O + 8}')
        for k in range(4):
            A(f'v_pk_mul_f32 {vr(O + 2 * k, 2)}, {vr(O + 2 * k, 2)}, v[20:21] op_sel_hi:[1,0]')
        PO = 24 + 4 * (blk & 1)
        for k in range(4):
            A(f'v_cvt_pk_bf16_f32 v{PO + k}, v{O + 2 * k}, v{O + 2 * k + 1}')
        A(f'buffer_store_dwordx4 {vr(PO)}, v2, s[20:23], s{64 + blk} offen sc0 sc1')
    stamp(A, 7)
    if OPT['stamp']:
        A('s_waitcnt vmcnt(0)')
    stamp(A, 8)
    stamp_flush(A, 1, 9, 3)
    A('G1_end:')
    A('s_endpgm')
    return A, (name, 512, 100 if OPT['stamp'] else 72, 256)


def gen_g2():
    A = Asm()
    name = 'g2_kernel'
    header(A, name)
    ACC, WR, XR, RES = 32, 64, 96, 224
    A('s_cmp_ge_u32 s2, 256')
    A('s_cbranch_scc1 G2_end')
    A('s_load_dwordx2 s[48:49], s[0:1], 0')
    A('s_load_dwordx2 s[50:51], s[0:1], 16')
    A('s_load_dwordx4 s[52:55], s[0:1], 48')
    A('s_load_dwordx2 s[56:57], s[0:1], 72')
    stamp_begin(A)
    stamp(A, 0)
    A('v_lshrrev_b32 v14, 6, v0')
    A('v_and_b32 v1, 63, v0')
    A('v_readfirstlane_b32 s3, v14')
    A('s_bfe_u32 s4, s2, 0x20001')
    A('s_lshl_b32 s4, s4, 2')
    A('s_bfe_u32 s6, s2, 0x20003')
    A('s_add_u32 s4, s4, s6')
    A('s_and_b32 s5, s2, 1')
    A('s_lshl_b32 s5, s5, 3')
    A('s_lshr_b32 s6, s2, 5')
    A('s_add_u32 s5, s5, s6')
    A('v_lshlrev_b32 v2, 4, v1')
    A('v_lshrrev_b32 v14, 3, v1')
    A('v_and_b32 v15, 7, v1')
    A('v_bfe_u32 v16, v1, 4, 2')
    A('v_lshlrev_b32 v16, 1, v16')
    A('v_xor_b32 v15, v15, v16')
    A('v_lshlrev_b32 v4, 11, v14')
    A('v_lshl_add_u32 v4, v15, 4, v4')
    for n in range(1, 4):
        A(f'v_add_u32 v{4 + n}, {n * 16384}, v4')
    A('v_lshrrev_b32 v14, 2, v1')
    A('v_and_b32 v15, 3, v1')
    A('v_bfe_u32 v16, v1, 3, 2')
    A('v_lshlrev_b32 v17, 7, v14')
    A('v_lshl_add_u32 v17, v15, 3, v17')
    for t in range(4):
        A(f'v_xor_b32 v18, {t}, v16')
        A(f'v_lshl_add_u32 v{8 + t}, v18, 5, v17')
    A('v_and_b32 v14, 15, v1')
    A('v_lshrrev_b32 v15, 4, v1')
    A('v_lshlrev_b32 v3, 11, v14')
    A('v_lshl_add_u32 v3, v15, 3, v3')
    A('s_lshl_b32 s6, s4, 2')
    A('s_add_u32 s6, s6, s3')
    A('s_lshl_b32 s7, s5, 7')
    A('s_lshl_b32 s40, s6, 16')
    A('s_add_u32 s40, s40, s7')
    A('s_add_u32 s41, s40, 0x8000')
    A('s_waitcnt lgkmcnt(0)')
    srd(A, 16, 48, 49, 2048 * 2048)
    for bb in range(2):
        for t in range(4):
            A(f'buffer_load_dwordx2 {vr(RES + (bb * 4 + t) * 2, 2)}, v3, s[16:19], s{40 + bb} offen offset:{32 * t}')
    A('s_add_u32 s8, s50, s7')
    A('s_addc_u32 s9, s51, 0')
    A(f's_sub_u32 s24, {1024 * 2048}, s7')
    srd(A, 8, 8, 9, 's24')
    A('s_add_u32 s28, s52, s7')
    A('s_addc_u32 s29, s53, 0')
    A('s_and_b32 s29, s29, 0xffff')
    A(f's_sub_u32 s30, {3584 * 2048}, s7')
    A(f's_mul_i32 s6, s6, {2 * XF2_ROW}')
    A(f's_add_u32 s12, s56, {XF2}')
    A('s_addc_u32 s13, s57, 0')
    A('s_add_u32 s12, s12, s6')
    A('s_addc_u32 s13, s13, 0')
    srd(A, 12, 12, 13, 2 * XF2_ROW)
    srd(A, 20, 54, 55, 2048 * 2048)
    A('s_lshl_b32 s31, s3, 16')
    A('s_mov_b32 s36, s31')
    A('s_mov_b32 s38, 0')
    A(f's_mov_b32 s39, {XF2_ROW}')
    A('s_lshl_b32 s44, s3, 12')

    def xload(step, bb):
        return f'buffer_load_dwordx4 {vr(XR + ((step % 16) * 2 + bb) * 4)}, v2, s[12:15], s{38 + bb} offen offset:{(step % 4) * 1024}'

    def dma(slot4, n):
        return (f's_add_u32 m0, s44, {slot4 * 16384 + n * 1024}',
                f'buffer_load_dwordx4 v{4 + n}, s[8:11], s36 offen lds')

    for t in range(-16, 0):
        if t >= -15:
            st = t + 15
            if st % 4 == 0 and st > 0:
                A('s_add_u32 s38, s38, 4096')
                A('s_add_u32 s39, s39, 4096')
            A(xload(st, 0))
            A(xload(st, 1))
        sg, n = (t + 16) // 4, (t + 16) % 4
        m, l = dma(sg, n)
        A(m)
        A('s_nop 0')
        A(l)
        if n == 3:
            A(f's_add_u32 s36, s36, {128 * 2048}')
    A('s_xor_b32 s44, s44, 0x10000')
    for r in range(ACC, ACC + 32):
        A(f'v_mov_b32 v{r}, 0')

    def reads(step):
        step %= 16
        st, ks = step // 4, step % 4
        out = []
        for t in range(4):
            dst = WR + ((step % 2) * 4 + t) * 4
            off = st * 16384 + ks * 4096
            out.append(f'ds_read_b64_tr_b16 {vr(dst, 2)}, v{8 + t} offset:{off}')
            out.append(f'ds_read_b64_tr_b16 {vr(dst + 2, 2)}, v{8 + t} offset:{off + 2048}')
        return out

    stamp(A, 1)
    A('s_waitcnt vmcnt(36)')
    A('s_barrier')
    for r in reads(0):
        A(r)
    A('s_mov_b32 s46, 0')
    stamp(A, 2)
    A('.p2align 6')
    A('G2_loop:')
    for step in range(16):
        st, ks = step // 4, step % 4
        rd = reads(step + 1)
        mf = []
        for t in range(4):
            for bb in range(2):
                acc = vr(ACC + (bb * 4 + t) * 4)
                mf.append(f'v_mfma_f32_16x16x32_bf16 {acc}, {vr(WR + ((step % 2) * 4 + t) * 4)}, {vr(XR + (step * 2 + bb) * 4)}, {acc}')
        m, l = dma(st, ks)
        if (step + 15) % 4 == 0:
            A('s_add_u32 s38, s38, 4096')
            A('s_add_u32 s39, s39, 4096')
        if ks == 3:
            A('s_waitcnt vmcnt(33) lgkmcnt(0)')
            A('s_barrier')
            if step == 15:
                for t in range(4):
                    A(f'v_xor_b32 v{8 + t}, 0x10000, v{8 + t}')
        else:
            A('s_waitcnt vmcnt(43) lgkmcnt(0)')
        A(m)
        fill = [rd[0], rd[1], xload(step + 15, 0), rd[2], rd[3], xload(step + 15, 1), rd[4], rd[5], l, rd[6], rd[7]]
        k = 0
        for i_, x in enumerate(mf):
            A(x)
            n = 2 if i_ < 3 else 1
            for _ in range(n):
                if k < len(fill):
                    A(fill[k])
                    k += 1
        while k < len(fill):
            A(fill[k])
            k += 1
        if ks == 3:
            A(f's_add_u32 s36, s36, {128 * 2048}')
    A('s_xor_b32 s44, s44, 0x10000')
    A('s_cmp_eq_u32 s46, 0')
    A('s_cselect_b32 s8, s28, s8')
    A('s_cselect_b32 s9, s29, s9')
    A('s_cselect_b32 s10, s30, s10')
    A('s_cselect_b32 s36, s31, s36')
    A('s_add_u32 s46, s46, 1')
    A('s_cmp_lt_u32 s46, 9')
    A('s_cbranch_scc1 G2_loop')
    stamp(A, 3)
    A('s_mov_b32 s24, 0xffff0000')
    for bb in range(2):
        for t in range(4):
            a = ACC + (bb * 4 + t) * 4
            r = RES + (bb * 4 + t) * 2
            A(f'v_lshlrev_b32 v14, 16, v{r}')
            A(f'v_and_b32 v15, s24, v{r}')
            A(f'v_lshlrev_b32 v16, 16, v{r + 1}')
            A(f'v_and_b32 v17, s24, v{r + 1}')
            A(f'v_pk_add_f32 {vr(a, 2)}, {vr(a, 2)}, v[14:15]')
            A(f'v_pk_add_f32 {vr(a + 2, 2)}, {vr(a + 2, 2)}, v[16:17]')
            A(f'v_cvt_pk_bf16_f32 v{a}, v{a}, v{a + 1}')
            A(f'v_cvt_pk_bf16_f32 v{a + 1}, v{a + 2}, v{a + 3}')
            A(f'buffer_store_dwordx2 {vr(a, 2)}, v3, s[20:23], s{40 + bb} offen offset:{32 * t}')
    if OPT['stamp']:
        A('s_waitcnt vmcnt(0)')
    stamp(A, 4)
    stamp_flush(A, 2, 5, 3)
    A('G2_end:')
    A('s_endpgm')
    return A, (name, 240, 100 if OPT['stamp'] else 64, 240)


def main():
    out = sys.argv[1]
    for a in sys.argv[2:]:
        k, v = a.split('=')
        OPT[k] = type(OPT[k])(int(v)) if k in OPT else int(v)
    ref = open('parallel_sum__sliding_block__glu_gated_geglu__prompt.s.ref').read().split('\n')
    head = [l for l in ref if l.startswith(';') and '@launch' not in l and 'Override' not in l and 'grid=ceil' not in l]
    txt = '\n'.join(head) + '\n'
    txt += '; @launch kernel=ln_kernel grid=(256,1,1) block=(256,1,1) lds=256\n'
    txt += '; @launch kernel=g1_kernel grid=(256,1,1) block=(256,1,1) lds=163840\n'
    txt += '; @launch kernel=g2_kernel grid=(256,1,1) block=(256,1,1) lds=131072\n'
    txt += '.amdgcn_target "amdgcn-amd-amdhsa--gfx950"\n'
    descs = []
    for g in (gen_ln, gen_g1, gen_g2):
        A, d = g()
        n = A.fix_hazards(verbose=OPT.get('verbose', False))
        print(f'{d[0]}: {len(A.lines)} lines, {n} hazard pads', file=sys.stderr)
        txt += A.text()
        descs.append(d)
    for d in descs:
        A = Asm()
        descriptor(A, *d)
        txt += A.text()
    open(out, 'w').write(txt)


if __name__ == '__main__':
    main()
```
